```python
import torch

def _softmax(x, axis=-1):
    return torch.softmax(x, dim=axis)
def _gelu(x):
    return torch.nn.functional.gelu(x, approximate="tanh")
def _silu(x):
    return torch.nn.functional.silu(x)
def _sigmoid(x):
    return torch.sigmoid(x)
def _layernorm(x, axis=-1, eps=1e-5):
    m = x.mean(dim=axis, keepdim=True)
    v = x.var(dim=axis, keepdim=True, unbiased=False)
    return (x - m) / torch.sqrt(v + eps)
def _scatter_add(tgt, idx, src, axis=0):
    return tgt.clone().index_add_(axis, idx, src)
def _segment_sum(src, seg, n):
    out = torch.zeros((n,) + src.shape[1:], dtype=src.dtype)
    return out.index_add_(0, seg, src)
def _pad(x, pw):
    flat = tuple(v for pair in reversed(pw) for v in pair)
    return torch.nn.functional.pad(x, flat)

kernel_name = 'recurrent_scan__spectral_gfnet__glu_gated_swiglu__prompt'

def setup_inputs():

    _w = (lambda a: (lambda t: t.to(torch.bfloat16) if t.is_floating_point() else t)(torch.as_tensor(a)))
    def _A_setup():
        B, S, D = 1, 2048, 640
        Df = D // 2 + 1
        return {
            "x": _w((lambda *s: torch.randn(*s, dtype=torch.bfloat16) * 0.2)(B, S, D)),
            "w_r": _w((lambda *s: torch.randn(*s, dtype=torch.bfloat16) * 1.6)(S, Df) * 0.02),
            "w_i": _w((lambda *s: torch.randn(*s, dtype=torch.bfloat16) * 1.6)(S, Df) * 0.02),
        }
    _A_in = _A_setup()

    def _B_setup():
        B, S, D, F = 1, 2048, 640, 1536
        return {
            "x": _w((lambda *s: torch.randn(*s, dtype=torch.bfloat16) * 0.2)(B, S, D)),
            "w1": _w((lambda *s: torch.randn(*s, dtype=torch.bfloat16) * 0.8)(D, F) * (2.0 / D) ** 0.5),
            "w3": _w((lambda *s: torch.randn(*s, dtype=torch.bfloat16) * 0.8)(D, F) * (2.0 / D) ** 0.5),
            "w2": _w((lambda *s: torch.randn(*s, dtype=torch.bfloat16) * 0.8)(F, D) * (2.0 / F) ** 0.5),
        }
    _B_in = _B_setup()

    return {
        "A_x": _A_in["x"],
        "A_w_r": _A_in["w_r"],
        "A_w_i": _A_in["w_i"],
        "B_x": _B_in["x"],
        "B_w1": _B_in["w1"],
        "B_w3": _B_in["w3"],
        "B_w2": _B_in["w2"],
    }

def reference(A_x, A_w_r, A_w_i, B_x, B_w1, B_w3, B_w2):
    def _A_ref(x, w_r, w_i):
        B, S, D = x.shape
        X = (lambda x, axes=(-2,-1): torch.fft.rfft2(x.float(), dim=axes))(x, axes=(-2, -1))
        W = w_r + 1j * w_i
        X = X * W
        y = (lambda x, s, axes=(-2,-1): torch.fft.irfft2(x, s=s, dim=axes).to(torch.bfloat16))(X, (S, D), axes=(-2, -1))
        return y

    def _B_ref(x, w1, w3, w2):
        gate = torch.einsum("bsd,df->bsf", x, w1)
        up = torch.einsum("bsd,df->bsf", x, w3)
        h = _silu(gate) * up
        out = torch.einsum("bsf,fd->bsd", h, w2)
        return out

    x = A_x
    xn = _layernorm(x, axis=-1)
    s = _A_ref(xn, A_w_r, A_w_i)
    g = _silu(_B_ref(xn, B_w1, B_w3, B_w2))
    return x + s * g
```

```python
class Asm:
    def __init__(self):
        self.lines = []
        self._uid = 0
    def e(self, s):
        self.lines.append("    " + s)
    def c(self, s):
        self.lines.append("    ; " + s)
    def raw(self, s):
        self.lines.append(s)
    def label(self, name):
        self.lines.append(name + ":")
    def uid(self, p="L"):
        self._uid += 1
        return f"{p}_{self._uid}"
    def text(self):
        return "\n".join(self.lines) + "\n"
    def wait(self, vm=None, lgkm=None):
        parts = []
        if vm is not None:
            assert 0 <= vm <= 63, vm
            parts.append(f"vmcnt({vm})")
        if lgkm is not None:
            assert 0 <= lgkm <= 15, lgkm
            parts.append(f"lgkmcnt({lgkm})")
        self.e("s_waitcnt " + " ".join(parts))
    def nop(self, n):
        while n > 0:
            k = min(n, 16)
            self.e(f"s_nop {k-1}")
            n -= k
    stamp_on = False
    stamp_n = 0
    def stamp(self):
        if not self.stamp_on: return
        i = self.stamp_n; self.stamp_n += 1
        assert i < 20
        self.e(f"s_memtime s[{60+2*i}:{61+2*i}]")
    def rstamp(self):
        if not self.stamp_on: return
        i = self.stamp_n; self.stamp_n += 1
        assert i < 20
        self.e(f"s_memrealtime s[{60+2*i}:{61+2*i}]")
    def stamp_flush(self, wsptr, off):
        if not self.stamp_on: return
        self.e("s_waitcnt lgkmcnt(0)")
        self.e("v_cmp_eq_u32 vcc, 0, v0")
        self.e("s_and_saveexec_b64 s[4:5], vcc")
        lab = self.uid("st")
        self.e(f"s_cbranch_execz {lab}")
        self.srd_off(8, wsptr, off, 1 << 20)
        self.e("s_lshl_b32 s3, s2, 8")
        self.e("v_mov_b32 v1, 0")
        for i in range(self.stamp_n):
            self.e(f"v_mov_b32 v2, s{60+2*i}")
            self.e(f"buffer_store_dword v2, v1, s[8:11], s3 offen offset:{4*i}")
            self.e("s_nop 1")
        self.label(lab)
        self.e("s_mov_b64 exec, s[4:5]")
        self.stamp_n = 0
    def srd(self, d, base, nbytes):
        self.e(f"s_mov_b32 s{d}, s{base}")
        self.e(f"s_and_b32 s{d+1}, s{base+1}, 0xffff")
        self.e(f"s_mov_b32 s{d+2}, {nbytes}")
        self.e(f"s_mov_b32 s{d+3}, 0x00020000")
    def srd_off(self, d, base, off, nbytes):
        self.e(f"s_add_u32 s{d}, s{base}, {off}")
        self.e(f"s_addc_u32 s{d+1}, s{base+1}, 0")
        self.e(f"s_and_b32 s{d+1}, s{d+1}, 0xffff")
        self.e(f"s_mov_b32 s{d+2}, {nbytes}")
        self.e(f"s_mov_b32 s{d+3}, 0x00020000")
    def srd_table(self, d, sym, nbytes):
        self.e(f"s_getpc_b64 s[{d}:{d+1}]")
        self.e(f"s_add_u32 s{d}, s{d}, {sym}@rel32@lo+4")
        self.e(f"s_addc_u32 s{d+1}, s{d+1}, {sym}@rel32@hi+12")
        self.e(f"s_and_b32 s{d+1}, s{d+1}, 0xffff")
        self.e(f"s_mov_b32 s{d+2}, {nbytes}")
        self.e(f"s_mov_b32 s{d+3}, 0x00020000")

def v(i, n=1):
    return f"v{i}" if n == 1 else f"v[{i}:{i+n-1}]"
def a(i, n=1):
    return f"a{i}" if n == 1 else f"a[{i}:{i+n-1}]"
def s(i, n=1):
    return f"s{i}" if n == 1 else f"s[{i}:{i+n-1}]"

def kernel_desc(name, vgpr, sgpr, accum):
    return f""".section .rodata,"a"
.p2align 6
.amdhsa_kernel {name}
  .amdhsa_next_free_vgpr {vgpr}
  .amdhsa_next_free_sgpr {sgpr}
  .amdhsa_accum_offset {accum}
  .amdhsa_group_segment_fixed_size 0
  .amdhsa_kernarg_size 80
  .amdhsa_user_sgpr_count 2
  .amdhsa_user_sgpr_kernarg_segment_ptr 1
  .amdhsa_system_sgpr_workgroup_id_x 1
  .amdhsa_float_denorm_mode_32 3
  .amdhsa_float_denorm_mode_16_64 3
.end_amdhsa_kernel
"""
```

```python
from dsl import *
from layout import *
from tables import DT_BYTES

PZ = 21504
SPEC_LDS = 4 * PZ

def wave_id(A):
    A.e("v_and_b32 v1, 63, v0")
    A.e("v_lshrrev_b32 v2, 6, v0")
    A.e("s_nop 0")
    A.e("v_readfirstlane_b32 s24, v2")
    A.e("s_nop 3")

def emit_spectral(A):
    e = A.e
    A.c("==== spectral forward role ====")
    A.rstamp(); A.stamp()
    A.srd(8, P_X, X_BYTES)
    wave_id(A)
    F = 64
    e("v_lshrrev_b32 v2, 2, v0")
    e("v_and_b32 v3, 3, v0")
    e("v_lshl_add_u32 v4, v2, 5, s30")
    e("s_mov_b32 s3, 1280")
    e("v_mul_lo_u32 v4, v4, s3")
    e("v_lshlrev_b32 v5, 4, v3")
    e("v_add_u32 v6, v4, v5")
    e("v_sub_u32 v7, v4, v5")
    for m in range(5):
        for seg, (vr, off) in enumerate(((6, 64 * m), (7, 624 - 64 * m), (6, 640 + 64 * m), (7, 1264 - 64 * m))):
            base = F + 8 * (4 * m + seg)
            e(f"buffer_load_dwordx4 {v(base+4,4)}, v{vr}, s[8:11], 0 offen offset:{off}")
    A.srd_table(12, "tab_ft", DT_BYTES)
    e("v_lshlrev_b32 v48, 4, v1")
    e("s_mul_i32 s25, s24, 51200")
    tabq = []
    for q in range(50):
        g = []
        if q % 4 == 0 and q:
            g.append("s_add_u32 s25, s25, 4096")
        g.append(f"buffer_load_dwordx4 {a(4*q,4)}, v48, s[12:15], s25 offen offset:{(q%4)*1024}")
        tabq.append(g)
    def tab(n=1):
        for _ in range(n):
            if tabq:
                for l in tabq.pop(0): e(l)
    A.srd_off(16, P_WS, Y1_OFF, Y1_BYTES)
    e("v_mul_u32_u24 v2, 336, v2")
    e("v_add_u32 v2, v2, v5")
    e("v_mov_b32 v4, 0")
    e("v_mov_b32 v5, 0")
    e("v_mov_b32 v8, 0")
    e("v_mov_b32 v9, 0")
    for idx in range(20):
        A.wait(vm=19 - idx)
        b = F + 8 * idx
        for j in range(4):
            e(f"v_lshlrev_b32 v{b+2*j}, 16, v{b+4+j}")
            e(f"v_and_b32 v{b+2*j+1}, 0xffff0000, v{b+4+j}")
        for p in range(4):
            e(f"v_pk_add_f32 v[4:5], v[4:5], {v(b+2*p,2)}")
    A.stamp()
    e("v_add_f32 v4, v4, v5")
    e("s_nop 1")
    e("v_add_f32_dpp v4, v4, v4 quad_perm:[1,0,3,2] row_mask:0xf bank_mask:0xf")
    e("s_nop 1")
    e("v_add_f32_dpp v4, v4, v4 quad_perm:[2,3,0,1] row_mask:0xf bank_mask:0xf")
    e("s_mov_b32 s3, 0x3acccccd")
    e("v_mul_f32 v4, s3, v4")
    e("v_cvt_pk_bf16_f32 v6, v4, v4")
    e("v_lshlrev_b32 v6, 16, v6")
    e("v_sub_f32 v5, v4, v6")
    e("v_xor_b32 v6, 0x80000000, v6")
    for r in range(0, 160, 2):
        e(f"v_pk_add_f32 {v(F+r,2)}, {v(F+r,2)}, v[6:7] op_sel_hi:[1,0]")
        e(f"v_pk_fma_f32 v[8:9], {v(F+r,2)}, {v(F+r,2)}, v[8:9]")
        if r % 16 == 0: tab()
    e("v_add_f32 v8, v8, v9")
    e("s_nop 1")
    e("v_add_f32_dpp v8, v8, v8 quad_perm:[1,0,3,2] row_mask:0xf bank_mask:0xf")
    e("s_nop 1")
    e("v_add_f32_dpp v8, v8, v8 quad_perm:[2,3,0,1] row_mask:0xf bank_mask:0xf")
    e("v_mul_f32 v8, s3, v8")
    e("v_fma_f32 v8, -v5, v5, v8")
    e("v_max_f32 v8, 0, v8")
    e("v_cvt_pk_bf16_f32 v8, v8, v8")
    e("v_lshlrev_b32 v8, 16, v8")
    e("v_add_f32 v8, 0x3727c5ac, v8")
    e("v_cvt_pk_bf16_f32 v8, v8, v8")
    e("v_lshlrev_b32 v8, 16, v8")
    e("v_sqrt_f32 v8, v8")
    e("s_nop 0")
    e("v_cvt_pk_bf16_f32 v8, v8, v8")
    e("v_lshlrev_b32 v8, 16, v8")
    e("v_rcp_f32 v8, v8")
    e("s_nop 0")
    for r in range(0, 160, 2):
        e(f"v_cvt_pk_bf16_f32 v10, v{F+r}, v{F+r+1}")
        e(f"v_lshlrev_b32 v{F+r}, 16, v10")
        e(f"v_and_b32 v{F+r+1}, 0xffff0000, v10")
        e(f"v_pk_mul_f32 {v(F+r,2)}, {v(F+r,2)}, v[8:9] op_sel_hi:[1,0]")
        e(f"v_cvt_pk_bf16_f32 v10, v{F+r}, v{F+r+1}")
        e(f"v_lshlrev_b32 v{F+r}, 16, v10")
        e(f"v_and_b32 v{F+r+1}, 0xffff0000, v10")
        if r % 4 == 0: tab()
    assert not tabq
    A.stamp()
    SW = "op_sel:[0,1] op_sel_hi:[1,0]"
    NG = "neg_lo:[0,1] neg_hi:[0,1]"
    for m in range(5):
        Ab, Bb, Cb, Eb = (F + 8 * (4 * m + s_) for s_ in range(4))
        St = 16 + 16 * (m & 1)
        for p in range(4):
            a_, c_ = v(Ab + 2 * p, 2), v(Cb + 2 * p, 2)
            b_, e_ = v(Bb + 6 - 2 * p, 2), v(Eb + 6 - 2 * p, 2)
            e(f"v_pk_add_f32 v[10:11], {a_}, {e_} {SW}")
            e(f"v_pk_add_f32 {a_}, {a_}, {e_} {SW} {NG}")
            e(f"v_pk_add_f32 v[12:13], {c_}, {b_} {SW}")
            e(f"v_pk_add_f32 {c_}, {c_}, {b_} {SW} {NG}")
            e("v_pk_add_f32 v[14:15], v[10:11], v[12:13]")
            e(f"v_cvt_pk_f16_f32 v{St+0+p}, v14, v15")
            e(f"v_pk_add_f32 v[14:15], {a_}, {c_}")
            e(f"v_cvt_pk_f16_f32 v{St+4+p}, v14, v15")
            e(f"v_pk_add_f32 v[14:15], v[10:11], v[12:13] {NG}")
            e(f"v_cvt_pk_f16_f32 v{St+8+p}, v14, v15")
            e(f"v_pk_add_f32 v[14:15], {a_}, {c_} {NG}")
            e(f"v_cvt_pk_f16_f32 v{St+12+p}, v14, v15")
        for z in range(4):
            e(f"ds_write_b128 v2, {v(St+4*z,4)} offset:{z*PZ + 64*m}")
    e("v_and_b32 v3, 31, v1")
    e("v_lshrrev_b32 v4, 5, v1")
    e("v_mul_u32_u24 v5, 336, v3")
    e("v_lshl_add_u32 v5, v4, 4, v5")
    e(f"s_mul_i32 s3, s24, {PZ}")
    e("v_add_u32 v5, s3, v5")
    A.wait(lgkm=0)
    e("s_barrier")
    A.stamp()
    def rd(t):
        b = t & 1
        for T in range(2):
            e(f"ds_read_b128 {v(32+8*b+4*T,4)}, v5 offset:{T*10752+32*t}")
    rd(0)
    A.wait(vm=0)
    for t in range(10):
        b = t & 1
        A.wait(lgkm=0)
        if t < 9:
            rd(t + 1)
        for T in range(2):
            for nt in range(5):
                d = F + 16 * (5 * T + nt)
                cs = "0" if t == 0 else v(d, 16)
                e(f"v_mfma_f32_32x32x16_f16 {v(d,16)}, {v(32+8*b+4*T,4)}, {a(4*(nt*10+t),4)}, {cs}")
    e("v_mul_u32_u24 v6, 144, v3")
    e("v_lshl_add_u32 v6, v4, 6, v6")
    e("s_barrier")
    e(f"s_mul_i32 s3, s24, 23040")
    e("v_add_u32 v6, s3, v6")
    e("v_lshrrev_b32 v7, 3, v1")
    e("v_and_b32 v8, 7, v1")
    e("v_mul_u32_u24 v9, 144, v7")
    e("v_lshl_add_u32 v9, v8, 4, v9")
    e("v_add_u32 v9, s3, v9")
    e("s_mul_i32 s3, s24, 160")
    e("v_add_u32 v7, s3, v7")
    e("v_lshlrev_b32 v7, 12, v7")
    e("v_lshl_add_u32 v7, v8, 4, v7")
    e("s_lshl_b32 s3, s30, 7")
    e("v_add_u32 v7, s3, v7")
    A.nop(8)
    A.stamp()
    k = 0
    for nt in range(5):
        for T in range(2):
            for gg in range(2):
                d = F + 16 * (5 * T + nt) + 8 * gg
                St = 16 + 4 * (k & 7); k += 1
                for p in range(4):
                    e(f"v_cvt_pk_f16_f32 v{St+p}, v{d+2*p}, v{d+2*p+1}")
                e(f"ds_write_b128 v6, {v(St,4)} offset:{nt*32*144 + (2*T+gg)*16}")
    A.wait(lgkm=0)
    for i in range(20):
        e(f"ds_read_b128 {v(F+4*i,4)}, v9 offset:{i*8*144}")
    e("s_mov_b32 s3, 0")
    for i in range(20):
        A.wait(lgkm=min(15, 19 - i))
        e(f"buffer_store_dwordx4 {v(F+4*i,4)}, v7, s[16:19], s3 offen")
        e("s_add_u32 s3, s3, 32768")
    A.stamp()
    if A.stamp_on: A.wait(vm=0)
    A.stamp(); A.rstamp()
    A.stamp_flush(P_WS, 32 * MB)
    e("s_endpgm")

def emit_wrelayout(A):
    e = A.e
    A.c("==== W relayout role ====")
    A.rstamp(); A.stamp()
    A.srd(8, P_WR, WRI_BYTES)
    A.srd(12, P_WI, WRI_BYTES)
    A.srd_off(16, P_WS, WP_OFF, WP_BYTES)
    A.srd_off(20, P_WS, WMAX_OFF, WMAX_BYTES)
    wave_id(A)
    SP = 10272
    SPL = 10368
    SPL = 11264
    e("s_and_b32 s25, s30, 1")
    e("s_lshr_b32 s26, s30, 1")
    e("s_and_b32 s26, s26, 3")
    e("s_lshr_b32 s27, s30, 3")
    e("s_lshl_b32 s3, s25, 5")
    e("s_lshl_b32 s28, s26, 9")
    e("s_add_u32 s3, s3, s28")
    e("s_lshl_b32 s28, s27, 8")
    e("s_add_u32 s3, s3, s28")
    e("s_mul_i32 s56, s3, 642")
    e("s_mul_i32 s28, s24, 41088")
    e("s_add_u32 s56, s56, s28")
    e(f"s_mul_i32 s57, s24, {SPL}")
    e("s_lshl_b32 s3, s25, 2")
    e("s_add_u32 s3, s3, s26")
    e("s_lshl_b32 s3, s3, 10")
    e("s_lshl_b32 s28, s27, 9")
    e("s_add_u32 s29, s3, s28")
    e("v_mov_b32 v10, 0")
    e("v_lshlrev_b32 v2, 4, v1")
    e("v_and_b32 v3, 15, v1")
    e("v_lshrrev_b32 v4, 4, v1")
    e("s_lshl_b32 s3, s24, 2")
    e("v_add_u32 v4, s3, v4")
    e("v_mul_u32_u24 v5, 642, v3")
    e("v_lshl_add_u32 v5, v4, 1, v5")
    e("v_lshlrev_b32 v6, 13, v4")
    e("v_lshl_add_u32 v6, v3, 4, v6")
    for lh in range(2):
        if lh:
            e("s_barrier")
            e(f"s_add_u32 s56, s56, {SP}")
            e("s_add_u32 s29, s29, 256")
        for arr in range(2):
            for n in range(11):
                e(f"s_add_u32 m0, s57, {arr*4*SPL + n*1024}")
                e(f"s_add_u32 s3, s56, {n*1024}")
                e(f"buffer_load_dwordx4 v2, s[{8+4*arr}:{11+4*arr}], s3 offen lds")
        A.wait(vm=0)
        e("s_barrier")
        e("s_mov_b32 s58, s29")
        NIT = 21
        def rd(it):
            B = 32 + 8 * (it % 3)
            for i in range(4):
                e(f"ds_read_u16 v{B+2*i}, v5 offset:{i*SPL + 32*it}")
                e(f"ds_read_u16 v{B+2*i+1}, v5 offset:{(4+i)*SPL + 32*it}") if (4+i)*SPL + 32*it < 65536 else e(f"ds_read_u16 v{B+2*i+1}, v7 offset:{(4+i)*SPL + 32*it - 45056}")
        e("v_add_u32 v7, 45056, v5")
        rd(0)
        for it in range(NIT):
            if it + 1 < NIT:
                rd(it + 1)
                A.wait(lgkm=8)
            else:
                A.wait(lgkm=0)
            B = 32 + 8 * (it % 3)
            P = 64 + 4 * (it % 8)
            if it >= 8 and it % 8 == 0:
                A.wait(vm=0)
            for i in range(4):
                e(f"v_lshl_or_b32 v{P+i}, v{B+2*i+1}, 16, v{B+2*i}")
            if it == NIT - 1:
                e(f"v_add_u32 v11, {16*it}, v4")
                e("v_cmp_gt_u32 vcc, 321, v11")
                e("s_and_saveexec_b64 s[100:101], vcc")
            for i in range(4):
                e(f"v_and_b32 v11, 0x7fff7fff, v{P+i}")
                e("v_pk_max_u16 v10, v10, v11")
            e(f"buffer_store_dwordx4 {v(P,4)}, v6, s[16:19], s58 offen")
            if it == NIT - 1:
                e("s_mov_b64 exec, s[100:101]")
            else:
                e(f"s_add_u32 s58, s58, {16*8192}")
        A.wait(vm=0)
    e("v_lshrrev_b32 v11, 16, v10")
    e("v_and_b32 v10, 0xffff, v10")
    e("v_max_u32 v10, v10, v11")
    for dpp in ("row_shr:1", "row_shr:2", "row_shr:4", "row_shr:8", "row_bcast:15 row_mask:0xa", "row_bcast:31 row_mask:0xc"):
        e("s_nop 1")
        if "row_mask" in dpp:
            e(f"v_max_u32_dpp v10, v10, v10 {dpp} bank_mask:0xf")
        else:
            e(f"v_max_u32_dpp v10, v10, v10 {dpp} row_mask:0xf bank_mask:0xf")
    e("v_cmp_eq_u32 vcc, 63, v1")
    e("s_and_saveexec_b64 s[100:101], vcc")
    e("s_lshl_b32 s3, s30, 4")
    e("s_lshl_b32 s28, s24, 2")
    e("s_add_u32 s3, s3, s28")
    e("v_mov_b32 v11, 0")
    e("buffer_store_dword v10, v11, s[20:23], s3 offen")
    e("s_mov_b64 exec, s[100:101]")
    A.stamp()
    if A.stamp_on: A.wait(vm=0)
    A.stamp(); A.rstamp()
    A.stamp_flush(P_WS, 32 * MB)
    e("s_endpgm")

def emit_w2relayout(A):
    e = A.e
    A.c("==== w2 relayout role ====")
    A.rstamp(); A.stamp()
    A.srd(8, P_W2, W2_BYTES)
    A.srd_off(16, P_WS, W2F_OFF, W2F_BYTES)
    wave_id(A)
    for p in range(5):
        e(f"v_lshlrev_b32 v20, 4, v1")
        e(f"v_add_u32 v20, {p*1024}, v20")
        e("v_mul_u32_u24 v21, 52429, v20")
        e("v_lshrrev_b32 v21, 26, v21")
        e("v_mul_u32_u24 v22, 1280, v21")
        e("v_sub_u32 v22, v20, v22")
        e("v_lshlrev_b32 v23, 6, v21")
        e("v_xor_b32 v22, v22, v23")
        e("v_mul_u32_u24 v21, 1280, v21")
        e(f"v_add_u32 v{2+p}, v21, v22")
    e("s_mul_i32 s56, s30, 122880")
    e("s_mul_i32 s3, s24, 30720")
    e("s_add_u32 s56, s56, s3")
    e("s_mov_b32 s57, s3")
    for q in range(6):
        for p in range(5):
            e(f"s_add_u32 m0, s57, {q*5120 + p*1024}")
            e("s_nop 0")
            e(f"buffer_load_dwordx4 v{2+p}, s[8:11], s56 offen lds")
        e("s_add_u32 s56, s56, 5120")
    e("v_lshrrev_b32 v20, 5, v1")
    e("v_lshrrev_b32 v21, 2, v1")
    e("v_and_b32 v21, 3, v21")
    e("v_lshl_add_u32 v22, v20, 2, v21")
    e("v_mul_u32_u24 v22, 1280, v22")
    e("v_lshrrev_b32 v23, 4, v1")
    e("v_and_b32 v23, 1, v23")
    e("v_lshl_add_u32 v22, v23, 5, v22")
    e("v_and_b32 v23, 3, v1")
    e("v_lshl_add_u32 v22, v23, 3, v22")
    e("s_mul_i32 s3, s24, 5")
    for q in range(5):
        e(f"s_add_u32 s25, s3, {q}")
        e("v_xor_b32 v23, s25, v21")
        e(f"v_lshl_add_u32 v{8+q}, v23, 6, v22")
        e(f"v_add_u32 v{13+q}, 61440, v{8+q}")
    e("v_lshlrev_b32 v18, 4, v1")
    e("s_mul_i32 s58, s24, 5")
    e("s_mul_i32 s58, s58, 98304")
    e("s_mul_i32 s3, s30, 6144")
    e("s_add_u32 s58, s58, s3")
    A.wait(vm=0)
    e("s_barrier")
    k = 0
    for q in range(5):
        for uu in range(3):
            for j in range(2):
                off = (32 * uu + 16 * j) * 1280
                ad = 8 + q
                if off >= 61440 - 10240:
                    ad = 13 + q; off -= 61440
                    if off < 0:
                        ad = 8 + q; off += 61440
                D = 32 + 4 * k; k += 1
                assert 0 <= off and off + 10240 < 65536, off
                e(f"ds_read_b64_tr_b16 {v(D,2)}, v{ad} offset:{off}")
                e(f"ds_read_b64_tr_b16 {v(D+2,2)}, v{ad} offset:{off+10240}")
    k = 0
    for q in range(5):
        for uu in range(3):
            for j in range(2):
                D = 32 + 4 * k; k += 1
                A.wait(lgkm=min(15, 2 * (30 - k)))
                e(f"buffer_store_dwordx4 {v(D,4)}, v18, s[16:19], s58 offen offset:{(uu*2+j)*1024 if (uu*2+j) < 4 else 0}" if (uu*2+j) < 4 else
                  f"buffer_store_dwordx4 {v(D,4)}, v18, s[16:19], s59 offen offset:{(uu*2+j-4)*1024}")
                if uu == 1 and j == 1:
                    e("s_add_u32 s59, s58, 4096")
        e("s_add_u32 s58, s58, 98304")
    A.stamp()
    if A.stamp_on: A.wait(vm=0)
    A.stamp(); A.rstamp()
    A.stamp_flush(P_WS, 32 * MB)
    e("s_endpgm")

def emit_aux(A):
    e = A.e
    e("s_sub_u32 s5, s5, 24")
    e("s_lshl_b32 s5, s5, 3")
    e("s_add_u32 s30, s5, s4")
    e("s_cmp_ge_u32 s30, 32")
    e("s_cbranch_scc1 k1_aux2")
    emit_spectral(A)
    A.label("k1_aux2")
    e("s_sub_u32 s30, s30, 32")
    e("s_cmp_ge_u32 s30, 16")
    e("s_cbranch_scc1 k1_aux3")
    emit_wrelayout(A)
    A.label("k1_aux3")
    e("s_sub_u32 s30, s30, 16")
    emit_w2relayout(A)
```

```python
from dsl import *
from layout import *

XST = 16384
W1_LDS = 49152
W3_LDS = 98304
STAT_LDS = 147456
GLU_LDS_BYTES = STAT_LDS + 3072

def frag_w(b, gu, j):
    return 32 + 32 * b + 4 * (2 * gu + j)
def frag_x(b, i):
    return 48 + 32 * b + 4 * i
def acc(gu, j, i):
    return 128 + 16 * (gu * 4 + j * 2 + i)

def emit_glu(A):
    e = A.e
    A.c("==== GLU role ====")
    A.rstamp()
    A.stamp()
    A.srd(8, P_X, X_BYTES)
    A.srd(12, P_W1, W13_BYTES)
    A.srd(16, P_W3, W13_BYTES)
    e("v_and_b32 v1, 63, v0")
    e("v_lshrrev_b32 v2, 6, v0")
    e("s_add_u32 s59, s30, s31")
    e("v_readfirstlane_b32 s24, v2")
    e("s_cmp_ge_u32 s59, 20")
    e("s_cselect_b32 s3, 20, 0")
    e("s_sub_u32 s59, s59, s3")
    e("s_cmp_ge_u32 s59, 10")
    e("s_cselect_b32 s3, 10, 0")
    e("s_sub_u32 s59, s59, s3")
    e("s_lshl_b32 s27, s59, 7")
    e("s_lshr_b32 s32, s24, 1")
    e("s_and_b32 s33, s24, 1")
    e("s_lshl_b32 s25, s24, 12")
    e(f"s_add_u32 s26, s25, {W1_LDS}")
    e("s_mov_b32 s29, 0x3f803f80")
    e("v_lshrrev_b32 v2, 3, v1")
    e("v_and_b32 v3, 7, v1")
    e("s_lshl_b32 s3, s24, 5")
    e("v_add_u32 v2, s3, v2")
    e("s_lshl_b32 s34, s30, 7")
    e("s_mov_b32 s35, 1280")
    for i in range(4):
        e(f"v_add_u32 v4, {8*i}, v2")
        e("v_lshrrev_b32 v5, 1, v4")
        e("v_and_b32 v5, 7, v5")
        e("v_xor_b32 v5, v5, v3")
        e("v_add_u32 v4, s34, v4")
        e("v_mul_lo_u32 v4, v4, s35")
        e(f"v_lshl_add_u32 v{10+i}, v5, 4, v4")
    e("v_lshrrev_b32 v2, 4, v1")
    e("v_and_b32 v3, 15, v1")
    e("v_lshlrev_b32 v4, 2, v2")
    e("v_xor_b32 v3, v3, v4")
    e("s_lshl_b32 s3, s24, 4")
    e("v_add_u32 v2, s3, v2")
    e("s_mov_b32 s35, 3072")
    e("v_mul_lo_u32 v2, v2, s35")
    e("v_lshl_add_u32 v2, v3, 4, v2")
    e("s_lshl_b32 s3, s31, 8")
    e("v_add_u32 v2, s3, v2")
    for i in range(4):
        e(f"v_add_u32 v{14+i}, {i*4*3072}, v2")

    def dma_chunk(c):
        st = c % 3
        out = []
        if c == 0:
            out.append(["s_mul_i32 s28, s27, 1536"])
        else:
            out.append(["s_add_u32 s27, s27, 128", "s_cmp_eq_u32 s27, 1280", "s_cselect_b32 s27, 0, s27",
                        "s_mul_i32 s28, s27, 1536"])
        for i in range(4):
            out.append([f"s_add_u32 m0, s25, {st*XST + i*1024}", "s_nop 0",
                        f"buffer_load_dwordx4 v{10+i}, s[8:11], s27 offen lds"])
        for i in range(4):
            out.append([f"s_add_u32 m0, s26, {st*XST + i*1024}", "s_nop 0",
                        f"buffer_load_dwordx4 v{14+i}, s[12:15], s28 offen lds"])
            out.append([f"s_add_u32 m0, s26, {W3_LDS-W1_LDS + st*XST + i*1024}", "s_nop 0",
                        f"buffer_load_dwordx4 v{14+i}, s[16:19], s28 offen lds"])
        return out

    for grp in dma_chunk(0):
        for l in grp:
            e(l)
    A.stamp()
    A.srd_off(20, P_WS, H_OFF, H_BYTES)
    A.srd_off(4, P_WS, STP_OFF, RS_BYTES + CSP_BYTES)
    A.srd(96, P_DBG, 256)
    e("v_and_b32 v2, 31, v1")
    e("v_lshrrev_b32 v3, 5, v1")
    e("v_lshrrev_b32 v4, 1, v2")
    e("v_and_b32 v4, 7, v4")
    e("s_lshl_b32 s3, s32, 6")
    e("s_lshl_b32 s35, s33, 5")
    e("s_add_u32 s3, s3, s35")
    e("v_add_u32 v5, s3, v2")
    e("v_lshlrev_b32 v30, 3, v5")
    e("v_lshlrev_b32 v5, 7, v5")
    for t in range(4):
        e(f"v_add_u32 v6, {2*t}, v3")
        e("v_xor_b32 v6, v6, v4")
        e(f"v_lshl_add_u32 v{18+t}, v6, 4, v5")
        e(f"v_xor_b32 v{88+t}, 0x1000, v{18+t}")
    e("v_lshrrev_b32 v4, 2, v1")
    e("v_and_b32 v4, 3, v4")
    e("v_lshl_add_u32 v5, v3, 3, v4")
    e("v_lshlrev_b32 v5, 8, v5")
    e("v_lshrrev_b32 v6, 4, v1")
    e("v_and_b32 v6, 1, v6")
    e("v_lshl_add_u32 v5, v6, 5, v5")
    e("v_and_b32 v6, 3, v1")
    e("v_lshl_add_u32 v5, v6, 3, v5")
    e("s_lshl_b32 s3, s33, 1")
    e("s_add_u32 s3, s3, s32")
    e("v_xor_b32 v6, s3, v4")
    e("v_lshl_add_u32 v22, v6, 6, v5")
    e(f"v_add_u32 v22, {W1_LDS}, v22")
    e("v_xor_b32 v23, 64, v22")
    e(f"v_add_u32 v24, {W3_LDS-W1_LDS}, v22")
    e(f"v_add_u32 v25, {W3_LDS-W1_LDS}, v23")
    e("s_lshl_b32 s3, s3, 7")
    e("v_lshl_add_u32 v31, v2, 2, s3")
    for r in range(26, 30):
        e(f"v_mov_b32 v{r}, 0")
    e("s_mul_i32 s56, s30, 10")
    e("s_add_u32 s56, s56, s59")
    e("s_lshl_b32 s56, s56, 10")
    e("s_mul_i32 s57, s31, 10")
    e("s_add_u32 s57, s57, s59")
    e("s_lshl_b32 s57, s57, 10")
    e(f"s_add_u32 s57, s57, {RS_BYTES}")

    def reads(ks):
        c, t = divmod(ks, 4)
        st = c % 3
        b = ks & 1
        out = []
        out.append([f"ds_read_b128 {v(frag_x(b,0),4)}, v{18+t} offset:{st*XST}"])
        out.append([f"ds_read_b128 {v(frag_x(b,1),4)}, v{88+t} offset:{st*XST}"])
        for gu in range(2):
            for j in range(2):
                base = frag_w(b, gu, j)
                ad = 22 + 2 * gu + j
                off = st * XST + t * 4096
                out.append([f"ds_read_b64_tr_b16 {v(base,2)}, v{ad} offset:{off}"])
                out.append([f"ds_read_b64_tr_b16 {v(base+2,2)}, v{ad} offset:{off+1024}"])
        return out

    def stat_ops(ks):
        b = ks & 1
        out = []
        if ks >= 4:
            return out
        fx = frag_x(b, 0)
        for r in range(4):
            out.append([f"v_dot2_f32_bf16 v26, v{fx+r}, s29, v26"])
            out.append([f"v_dot2_f32_bf16 v27, v{fx+r}, v{fx+r}, v27"])
        for gu in range(2):
            fw = frag_w(b, gu, 0)
            for r in range(4):
                out.append([f"v_dot2_f32_bf16 v{28+gu}, v{fw+r}, s29, v{28+gu}"])
        return out

    NCH = 10
    for grp in dma_chunk(1):
        for l in grp:
            e(l)
    A.stamp()
    A.wait(vm=12)
    e("s_barrier")
    A.stamp()
    for grp in reads(0):
        for l in grp:
            e(l)
    pending_dma = dma_chunk(2)
    for ks in range(4 * NCH):
        c, t = divmod(ks, 4)
        b = ks & 1
        A.c(f"-- kstep {ks}")
        A.wait(lgkm=0)
        pre = []
        if t == 3 and c + 1 < NCH:
            assert not pending_dma
            if c == NCH - 2:
                e("s_lshl_b32 s3, s30, 2")
                e("s_lshl_b32 s35, s31, 2")
                e("v_mov_b32 v92, 0")
                e("buffer_load_dword v93, v92, s[96:99], s3 offen sc1")
                e("buffer_load_dword v94, v92, s[96:99], s35 offen offset:64 sc1")
            A.wait(vm=12 if c + 2 < NCH else 0)
            e("s_barrier")
            A.stamp()
            if c == 1:
                lab = A.uid("pub")
                e("s_cmp_lg_u32 s24, 0")
                e(f"s_cbranch_scc1 {lab}")
                e("v_cmp_eq_u32 vcc, 0, v1")
                e("s_and_saveexec_b64 s[100:101], vcc")
                e("v_mov_b32 v92, 0")
                e("v_mov_b32 v93, 1")
                lab2 = A.uid("pub")
                e("s_cmp_ge_u32 s31, 10")
                e(f"s_cbranch_scc1 {lab2}")
                e("s_lshl_b32 s3, s30, 2")
                e("buffer_atomic_add v93, v92, s[96:99], s3 offen sc1")
                A.label(lab2)
                lab3 = A.uid("pub")
                e("s_cmp_ge_u32 s30, 10")
                e(f"s_cbranch_scc1 {lab3}")
                e("s_lshl_b32 s3, s31, 2")
                e("buffer_atomic_add v93, v92, s[96:99], s3 offen offset:64 sc1")
                A.label(lab3)
                e("s_mov_b64 exec, s[100:101]")
                A.label(lab)
            if c == NCH - 2:
                lp = A.uid("spin"); ok = A.uid("spinok")
                e("s_mov_b32 s58, 0")
                A.label(lp)
                e("v_readfirstlane_b32 s3, v93")
                e("v_readfirstlane_b32 s35, v94")
                e("s_nop 3")
                e("s_add_u32 s3, s3, s35")
                e("s_cmp_ge_u32 s3, 20")
                e(f"s_cbranch_scc1 {ok}")
                e("s_add_u32 s58, s58, 1")
                e("s_cmp_ge_u32 s58, 0x4000")
                e(f"s_cbranch_scc1 {ok}")
                e("s_sleep 4")
                e("s_lshl_b32 s3, s30, 2")
                e("s_lshl_b32 s35, s31, 2")
                e("buffer_load_dword v93, v92, s[96:99], s3 offen sc1")
                e("buffer_load_dword v94, v92, s[96:99], s35 offen offset:64 sc1")
                A.wait(vm=0)
                e(f"s_branch {lp}")
                A.label(ok)
                e("v_lshlrev_b32 v92, 2, v0")
                e("s_mul_i32 s3, s31, 10240")
                e(f"s_add_u32 s3, s3, {RS_BYTES}")
                e("s_add_u32 s35, s3, 4096")
                e("s_add_u32 s58, s3, 8192")
                for cc in range(10):
                    sreg = ["s3", "s35", "s58"][cc // 4]
                    pre.append([f"buffer_load_dword v{94+cc}, v92, s[4:7], {sreg} offen offset:{(cc%4)*1024} sc1"])
                e("v_and_b32 v93, 127, v0")
                e("v_lshlrev_b32 v93, 3, v93")
                e("v_lshrrev_b32 v104, 7, v0")
                e("v_mul_u32_u24 v104, 5120, v104")
                e("v_add_u32 v93, v93, v104")
                e("s_mul_i32 s56, s30, 10240")
                e("s_add_u32 s57, s56, 4096")
                for cc in range(5):
                    sreg = ["s56", "s57"][cc // 4]
                    pre.append([f"buffer_load_dwordx2 {v(104+2*cc,2)}, v93, s[4:7], {sreg} offen offset:{(cc%4)*1024} sc1"])
            if c + 3 < NCH and c != 0:
                pending_dma = dma_chunk(c + 3)
        if ks == 4:
            e("s_nop 2")
            for r in range(26, 30):
                e(f"v_mov_b32 v{r-20}, v{r}")
            e("s_nop 1")
            for r in range(26, 30):
                e(f"v_permlane32_swap_b32 v{r}, v{r-20}")
            e("s_nop 1")
            for r in range(26, 30):
                e(f"v_add_f32 v{r}, v{r}, v{r-20}")
            e("buffer_store_dwordx2 v[26:27], v30, s[4:7], s56 offen sc1")
            e("buffer_store_dword v28, v31, s[4:7], s57 offen sc1")
            e("buffer_store_dword v29, v31, s[4:7], s57 offen offset:512 sc1")
            pending_dma = dma_chunk(3)
        fill = []
        if ks + 1 < 4 * NCH:
            fill += reads(ks + 1)
        fill += pre
        so = stat_ops(ks)
        ndm = 5 if ks < 8 else 4
        dm = pending_dma[:ndm]
        pending_dma = pending_dma[ndm:]
        rest = []
        while so or dm:
            if so: rest.append(so.pop(0))
            if so: rest.append(so.pop(0))
            if so: rest.append(so.pop(0))
            if dm: rest.append(dm.pop(0))
        fill += rest
        nf = len(fill)
        mi = 0
        for gu in range(2):
            for j in range(2):
                for i in range(2):
                    d = acc(gu, j, i)
                    csrc = "0" if ks == 0 else v(d, 16)
                    e(f"v_mfma_f32_32x32x16_bf16 {v(d,16)}, {v(frag_w(b,gu,j),4)}, {v(frag_x(b,i),4)}, {csrc}")
                    lo = nf * mi // 8
                    hi = nf * (mi + 1) // 8
                    for grp in fill[lo:hi]:
                        for l in grp:
                            e(l)
                    mi += 1
    assert not pending_dma
    A.c("-- epilogue: stats exchange")
    A.stamp()
    A.wait(vm=0)
    for cc in range(1, 10):
        e(f"v_add_f32 v94, v94, v{94+cc}")
    for cc in range(1, 5):
        e(f"v_pk_add_f32 v[104:105], v[104:105], {v(104+2*cc,2)}")
    e(f"v_add_u32 v92, {STAT_LDS+2048}, v92")
    e("ds_write_b32 v92, v94")
    e("v_lshlrev_b32 v93, 3, v0")
    e(f"v_add_u32 v93, {STAT_LDS}, v93")
    e("ds_write_b64 v93, v[104:105]")
    e("v_and_b32 v2, 31, v1")
    e("v_lshrrev_b32 v3, 5, v1")
    A.wait(lgkm=0)
    e("s_barrier")
    e(f"v_add_u32 v4, {STAT_LDS}, v30")
    e("v_xor_b32 v8, 0x100, v4")
    e("ds_read_b64 v[6:7], v4")
    e("ds_read_b64 v[14:15], v4 offset:1024")
    e("ds_read_b64 v[16:17], v8 offset:1024")
    e("ds_read_b64 v[8:9], v8")
    e("s_lshl_b32 s3, s33, 1")
    e("s_add_u32 s3, s3, s32")
    e("s_lshl_b32 s3, s3, 7")
    e(f"s_add_u32 s3, s3, {STAT_LDS+2048}")
    e("v_lshl_add_u32 v5, v3, 4, s3")
    e("v_xor_b32 v10, 0x80, v5")
    for gu in range(2):
        for j in range(2):
            for g in range(4):
                dst = 32 + 16 * (2 * gu + j) + 4 * g
                ad = 5 if j == 0 else 10
                e(f"ds_read_b128 {v(dst,4)}, v{ad} offset:{gu*512 + g*32}")
    A.wait(lgkm=0)
    e("v_pk_add_f32 v[6:7], v[6:7], v[14:15]")
    e("v_pk_add_f32 v[8:9], v[8:9], v[16:17]")
    e("s_mov_b32 s3, 0x3acccccd")
    e("s_mov_b32 s35, 0x3727c5ac")
    for i in range(2):
        su, sq = 6 + 2 * i, 7 + 2 * i
        nm, ct, cd = 96 + 8 * i, 98 + 8 * i, 100 + 8 * i
        e(f"v_mul_f32 v{su}, s3, v{su}")
        e(f"v_mul_f32 v{sq}, s3, v{sq}")
        e(f"v_fma_f32 v{sq}, -v{su}, v{su}, v{sq}")
        e(f"v_max_f32 v{sq}, 0, v{sq}")
        e(f"v_cvt_pk_bf16_f32 v11, v{su}, v{sq}")
        e(f"v_lshlrev_b32 v{nm}, 16, v11")
        e(f"v_xor_b32 v{nm}, 0x80000000, v{nm}")
        e("v_and_b32 v11, 0xffff0000, v11")
        e("v_add_f32 v11, s35, v11")
        e("v_cvt_pk_bf16_f32 v11, v11, v11")
        e("v_lshlrev_b32 v11, 16, v11")
        e("v_sqrt_f32 v11, v11")
        e("s_nop 0")
        e("v_cvt_pk_bf16_f32 v11, v11, v11")
        e("v_lshlrev_b32 v11, 16, v11")
        e(f"v_mul_f32 v{cd}, v11, v11")
        e("v_rcp_f32 v11, v11")
        e("s_nop 0")
        e(f"v_mul_f32 v{ct}, 0xbfb8aa3b, v11")
    e("v_lshlrev_b32 v12, 4, v1")
    e("s_lshl_b32 s3, s30, 2")
    e("s_lshl_b32 s35, s32, 1")
    e("s_add_u32 s3, s3, s35")
    e("s_lshl_b32 s56, s31, 2")
    e("s_lshl_b32 s35, s33, 1")
    e("s_add_u32 s56, s56, s35")
    BC = "op_sel_hi:[1,0,1]"
    for i in range(2):
        nm, ct, cd = 96 + 8 * i, 98 + 8 * i, 100 + 8 * i
        for j in range(2):
            e(f"s_xor_b32 s57, s33, {i}")
            e("s_add_u32 s57, s57, s3")
            e("s_mul_i32 s57, s57, 48")
            e(f"s_xor_b32 s58, s32, {j}")
            e("s_add_u32 s57, s57, s58")
            e("s_add_u32 s57, s57, s56")
            e("s_lshl_b32 s57, s57, 11")
            ag, au = acc(0, j, i), acc(1, j, i)
            cg, cu = 32 + 16 * j, 32 + 16 * (2 + j)
            T = 112
            for p in range(8):
                r = 2 * p
                e(f"v_pk_fma_f32 {v(ag+r,2)}, {v(cg+r,2)}, {v(nm,2)}, {v(ag+r,2)} {BC}")
                e(f"v_pk_fma_f32 {v(au+r,2)}, {v(cu+r,2)}, {v(nm,2)}, {v(au+r,2)} {BC}")
                e(f"v_pk_mul_f32 {v(T+r,2)}, {v(ag+r,2)}, {v(ct,2)} op_sel_hi:[1,0]")
            for r in range(16):
                e(f"v_exp_f32 v{T+r}, v{T+r}")
            for p in range(8):
                r = 2 * p
                e(f"v_pk_mul_f32 {v(ag+r,2)}, {v(ag+r,2)}, {v(au+r,2)}")
                e(f"v_pk_fma_f32 {v(T+r,2)}, {v(T+r,2)}, {v(cd,2)}, {v(cd,2)} op_sel_hi:[1,0,0]")
            for r in range(16):
                e(f"v_rcp_f32 v{T+r}, v{T+r}")
            e("s_nop 0")
            for p in range(8):
                r = 2 * p
                e(f"v_pk_mul_f32 {v(ag+r,2)}, {v(ag+r,2)}, {v(T+r,2)}")
            for p in range(8):
                r = 2 * p
                e(f"v_cvt_pk_bf16_f32 v{au+p}, v{ag+r}, v{ag+r+1}")
            e(f"buffer_store_dwordx4 {v(au,4)}, v12, s[20:23], s57 offen")
            e(f"buffer_store_dwordx4 {v(au+4,4)}, v12, s[20:23], s57 offen offset:1024")
    A.stamp()
    if A.stamp_on:
        A.e("s_waitcnt vmcnt(0)")
    A.stamp()
    A.rstamp()
    A.stamp_flush(P_WS, 32 * MB)
    e("s_endpgm")
```

```python
from dsl import *
from layout import *
from tables import FFT_TAB_BYTES, DT_BYTES
from k1_aux import wave_id

def overlap(A, mf, va, lead=2, pre_nop=True):
    e = A.e
    mf = list(mf); va = list(va)
    n = len(mf)
    lead = min(lead, n)
    for m in mf[:lead]:
        e(m)
    if va:
        A.nop(12)
    rest = mf[lead:]
    if not rest:
        for x in va: e(x)
        return
    k = len(rest)
    for i, m in enumerate(rest):
        lo = len(va) * i // k; hi = len(va) * (i + 1) // k
        for x in va[lo:hi]: e(x)
        e(m)

def wmax_scale(A, vtmp, sdst):
    e = A.e
    for dpp in ("row_shr:1", "row_shr:2", "row_shr:4", "row_shr:8", "row_bcast:15 row_mask:0xa", "row_bcast:31 row_mask:0xc"):
        e("s_nop 1")
        if "row_mask" in dpp:
            e(f"v_max_u32_dpp v{vtmp}, v{vtmp}, v{vtmp} {dpp} bank_mask:0xf")
        else:
            e(f"v_max_u32_dpp v{vtmp}, v{vtmp}, v{vtmp} {dpp} row_mask:0xf bank_mask:0xf")
    e("s_nop 1")
    e(f"v_readlane_b32 s{sdst}, v{vtmp}, 63")
    e("s_nop 3")
    e(f"s_lshr_b32 s{sdst}, s{sdst}, 7")
    e(f"s_and_b32 s{sdst}, s{sdst}, 0xff")
    e(f"s_min_u32 s{sdst}, s{sdst}, 249")
    e(f"s_sub_u32 s{sdst}, 250, s{sdst}")

def emit_fft(A):
    e = A.e
    A.c("==== column fft role ====")
    A.rstamp(); A.stamp()
    wave_id(A)
    e("s_lshl_b32 s25, s30, 2")
    e("s_add_u32 s25, s25, s24")
    e("s_cmp_gt_u32 s25, 320")
    e("s_cbranch_scc1 k2_done")
    A.srd_off(8, P_WS, Y1_OFF, Y1_BYTES)
    A.srd_off(12, P_WS, WP_OFF, WP_BYTES)
    A.srd_table(16, "tab_fft", FFT_TAB_BYTES)
    A.srd_off(20, P_WS, Y2_OFF, Y2_BYTES)
    A.srd_off(4, P_WS, WMAX_OFF, WMAX_BYTES)
    e("s_and_b32 s26, s25, 1")
    e("s_lshr_b32 s27, s25, 1")
    e("s_mul_i32 s28, s26, 320")
    e("s_add_u32 s28, s28, s27")
    e("s_add_u32 s29, s28, 160")
    e("s_xor_b32 s3, s26, 1")
    e("s_sub_u32 s29, s29, s3")
    e("s_lshl_b32 s28, s28, 12")
    e("s_lshl_b32 s29, s29, 12")
    e("s_cmp_eq_u32 s25, 320")
    e("s_cselect_b32 s28, 0x40000000, s28")
    e("s_cmp_eq_u32 s25, 0")
    e("s_cselect_b32 s29, 0x40000000, s29")
    e("v_and_b32 v2, 31, v1")
    e("v_lshrrev_b32 v3, 5, v1")
    e("v_lshlrev_b32 v4, 7, v2")
    e("v_lshl_add_u32 v4, v3, 6, v4")
    e("v_lshlrev_b32 v5, 4, v1")
    e("v_lshlrev_b32 v6, 2, v1")
    e("buffer_load_dword v7, v6, s[4:7], 0 offen")
    XR, XI, T1C, T1S, DR, DI, PR, PI, WW = 8, 24, 40, 72, 128, 160, 192, 208, 224
    for t in range(4):
        e(f"buffer_load_dwordx4 {v(XR+4*t,4)}, v4, s[8:11], s28 offen offset:{16*t}")
    for t in range(4):
        e(f"buffer_load_dwordx4 {v(XI+4*t,4)}, v4, s[8:11], s29 offen offset:{16*t}")
    def tabload(dst, q):
        sreg = 56 + (q // 4) % 2
        e(f"s_mov_b32 s{sreg}, {(q//4)*4096}")
        e(f"buffer_load_dwordx4 {dst}, v5, s[16:19], s{sreg} offen offset:{(q%4)*1024}")
    for q in range(24):
        tabload(a(4*q, 4), q)
    for q in range(16):
        tabload(v(T1C+4*q, 4), 30 + q)
    for q in range(6):
        tabload(a(96+4*q, 4), 24 + q)
    e("s_lshl_b32 s3, s25, 13")
    e("s_add_u32 s58, s3, 4096")
    for q in range(8):
        e(f"buffer_load_dwordx4 {v(WW+4*q,4)}, v5, s[12:15], {'s3' if q<4 else 's58'} offen offset:{(q%4)*1024}")
    A.wait(vm=62)
    wmax_scale(A, 7, 59)
    e("s_cmp_eq_u32 s25, 0")
    e("s_cselect_b32 s3, 0, 1")
    e("s_cmp_eq_u32 s25, 320")
    e("s_cselect_b32 s3, 0, s3")
    e("s_add_u32 s59, s59, s3")
    e("s_lshl_b32 s59, s59, 23")
    e("v_mov_b32 v6, s59")
    C64 = lambda t, T: a(4 * (2 * t + T), 4)
    S64 = lambda t, T: a(32 + 4 * (2 * t + T), 4)
    N64 = lambda t, T: a(64 + 4 * (2 * t + T), 4)
    C32 = lambda t: a(96 + 4 * t, 4)
    S32 = lambda t: a(104 + 4 * t, 4)
    N32 = lambda t: a(112 + 4 * t, 4)
    MF = "v_mfma_f32_32x32x16_f16"
    def chain(d, terms):
        out = []
        for n, (x, y) in enumerate(terms):
            out.append(f"{MF} {v(d,16)}, {x}, {y}, {'0' if n==0 else v(d,16)}")
        return out
    def ilv(a_, b_):
        out = []
        for x, y in zip(a_, b_): out += [x, y]
        return out
    def S1(T):
        re = chain(DR + 16 * T, [(v(XR+4*t,4), C64(t,T)) for t in range(4)] + [(v(XI+4*t,4), S64(t,T)) for t in range(4)])
        im = chain(DI + 16 * T, [(v(XI+4*t,4), C64(t,T)) for t in range(4)] + [(v(XR+4*t,4), N64(t,T)) for t in range(4)])
        return ilv(re, im)
    def S2(T):
        pr = lambda t: v(PR + 8 * T + 4 * t, 4); pi_ = lambda t: v(PI + 8 * T + 4 * t, 4)
        re = chain(DR + 16 * T, [(C32(t), pr(t)) for t in range(2)] + [(S32(t), pi_(t)) for t in range(2)])
        im = chain(DI + 16 * T, [(C32(t), pi_(t)) for t in range(2)] + [(N32(t), pr(t)) for t in range(2)])
        return ilv(re, im)
    def S3(T):
        pr = lambda t: v(PR + 8 * T + 4 * t, 4); pi_ = lambda t: v(PI + 8 * T + 4 * t, 4)
        re = chain(DR + 16 * T, [(pr(t), C32(t)) for t in range(2)] + [(pi_(t), N32(t)) for t in range(2)])
        im = chain(DI + 16 * T, [(pi_(t), C32(t)) for t in range(2)] + [(pr(t), S32(t)) for t in range(2)])
        return ilv(re, im)
    def S4(T):
        pr = lambda t: v(PR + 4 * t, 4); pi_ = lambda t: v(PI + 4 * t, 4)
        re = chain(DR + 16 * T, [(pr(t), C64(t,T)) for t in range(4)] + [(pi_(t), N64(t,T)) for t in range(4)])
        im = chain(DI + 16 * T, [(pi_(t), C64(t,T)) for t in range(4)] + [(pr(t), S64(t,T)) for t in range(4)])
        return ilv(re, im)
    NEG = "neg_lo:[1,0,0] neg_hi:[1,0,0]"
    def TW(T, cb, sb):
        out = []
        for p in range(8):
            dr, di = v(DR + 16 * T + 2 * p, 2), v(DI + 16 * T + 2 * p, 2)
            c_, s_ = v(cb + 16 * T + 2 * p, 2), v(sb + 16 * T + 2 * p, 2)
            t0 = 104 + 4 * (p & 1); t1 = t0 + 2
            out.append(f"v_pk_mul_f32 {v(t0,2)}, {dr}, {c_}")
            out.append(f"v_pk_mul_f32 {v(t1,2)}, {dr}, {s_}")
            out.append(f"v_pk_fma_f32 {v(t0,2)}, {di}, {s_}, {v(t0,2)} {NEG}")
            out.append(f"v_pk_fma_f32 {v(t1,2)}, {di}, {c_}, {v(t1,2)}")
            out.append(f"v_cvt_pk_f16_f32 v{PR+8*T+p}, v{t0}, v{t0+1}")
            out.append(f"v_cvt_pk_f16_f32 v{PI+8*T+p}, v{t1}, v{t1+1}")
        return out
    def WM(T):
        out = []
        for p in range(8):
            dr, di = v(DR + 16 * T + 2 * p, 2), v(DI + 16 * T + 2 * p, 2)
            w0 = WW + 16 * T + 2 * p
            b = 112 + 8 * (p & 1)
            wr, wi, t0, t1 = b, b + 2, b + 4, b + 6
            out.append(f"v_lshlrev_b32 v{wr}, 16, v{w0}")
            out.append(f"v_lshlrev_b32 v{wr+1}, 16, v{w0+1}")
            out.append(f"v_and_b32 v{wi}, 0xffff0000, v{w0}")
            out.append(f"v_and_b32 v{wi+1}, 0xffff0000, v{w0+1}")
            out.append(f"v_pk_mul_f32 {v(wr,2)}, {v(wr,2)}, v[6:7] op_sel_hi:[1,0]")
            out.append(f"v_pk_mul_f32 {v(wi,2)}, {v(wi,2)}, v[6:7] op_sel_hi:[1,0]")
            out.append(f"v_pk_mul_f32 {v(t0,2)}, {dr}, {v(wr,2)}")
            out.append(f"v_pk_mul_f32 {v(t1,2)}, {dr}, {v(wi,2)}")
            out.append(f"v_pk_fma_f32 {v(t0,2)}, {di}, {v(wi,2)}, {v(t0,2)} {NEG}")
            out.append(f"v_pk_fma_f32 {v(t1,2)}, {di}, {v(wr,2)}, {v(t1,2)}")
            out.append(f"v_cvt_pk_f16_f32 v{PR+8*T+p}, v{t0}, v{t0+1}")
            out.append(f"v_cvt_pk_f16_f32 v{PI+8*T+p}, v{t1}, v{t1+1}")
        return out
    e("v_lshlrev_b32 v4, 6, v2")
    e("v_lshl_add_u32 v4, v3, 5, v4")
    A.stamp()
    A.wait(vm=30)
    A.stamp()
    overlap(A, S1(0), [])
    A.wait(vm=14)
    overlap(A, S1(1), TW(0, T1C, T1S))
    for q in range(8):
        tabload(v(XR + 4 * q, 4), 46 + q)
    A.wait(vm=16)
    e("s_nop 1")
    overlap(A, S2(0), TW(1, T1C, T1S), lead=1)
    for q in range(8):
        tabload(v(T1C + 4 * q, 4), 54 + q)
    A.wait(vm=16)
    e("s_nop 1")
    overlap(A, S2(1), WM(0), lead=1)
    e("s_nop 1")
    overlap(A, S3(0), WM(1), lead=1)
    A.wait(vm=0)
    e("s_nop 1")
    overlap(A, S3(1), TW(0, XR, T1C), lead=1)
    A.nop(14)
    for x in TW(1, XR, T1C): e(x)
    e("s_nop 1")
    A.stamp()
    def OUT(T):
        out = []
        for (D, sreg, St) in ((DR, "s28", 72), (DI, "s29", 88)):
            St2 = St + 8 * T
            for p in range(8):
                out.append(f"v_cvt_pk_f16_f32 v{St2+p}, v{D+16*T+2*p}, v{D+16*T+2*p+1}")
            out.append(f"buffer_store_dwordx4 {v(St2,4)}, v4, s[20:23], {sreg} offen offset:{2048*T}")
            out.append(f"buffer_store_dwordx4 {v(St2+4,4)}, v4, s[20:23], {sreg} offen offset:{2048*T+16}")
        return out
    overlap(A, S4(0), [])
    overlap(A, S4(1), OUT(0))
    A.nop(14)
    for x in OUT(1): e(x)
    A.stamp()
    if A.stamp_on: A.wait(vm=0)
    A.stamp(); A.rstamp()
    A.stamp_flush(P_WS, 33 * MB)
    e("s_endpgm")

RED_STRIDE = 528
RED_W = 64 * RED_STRIDE
G2_LDS = 4 * RED_W

def emit_gemm2(A, DEPTH=6):
    e = A.e
    A.c("==== gemm2 role ====")
    A.rstamp(); A.stamp()
    A.srd_off(8, P_WS, H_OFF, H_BYTES)
    A.srd_off(12, P_WS, W2F_OFF, W2F_BYTES)
    wave_id(A)
    e("v_lshlrev_b32 v2, 4, v1")
    e("s_mul_i32 s3, s24, 24576")
    e("s_mul_i32 s25, s30, 196608")
    e("s_add_u32 s25, s25, s3")
    e("s_add_u32 s26, s25, 98304")
    e("s_mul_i32 s27, s31, 98304")
    e("s_add_u32 s27, s27, s3")
    e("s_sub_u32 s56, 9, s31")
    e("s_mul_i32 s28, s56, 98304")
    e("s_add_u32 s28, s28, s3")
    e(f"s_add_u32 s29, s27, {10*98304}")
    e(f"s_add_u32 s32, s28, {10*98304}")
    sregs = [25, 26, 27, 28, 29, 32]
    NK = 24
    def loads(ks):
        slot = ks % DEPTH
        out = []
        off = (ks % 4) * 1024
        for q in range(6):
            srd = "s[8:11]" if q < 2 else "s[12:15]"
            out.append(f"buffer_load_dwordx4 {a(24*slot+4*q,4)}, v2, {srd}, s{sregs[q]} offen offset:{off}")
        if ks % 4 == 3:
            for q in range(6):
                out.append(f"s_add_u32 s{sregs[q]}, s{sregs[q]}, 4096")
        return out
    for ks in range(DEPTH):
        for l in loads(ks): e(l)
    A.stamp()
    acc = lambda grp, i: 128 + 16 * (2 * grp + i)
    for ks in range(NK):
        slot = ks % DEPTH
        rem = min(NK - 1 - ks, DEPTH - 1)
        A.wait(vm=6 * rem)
        nxt = loads(ks + DEPTH) if ks + DEPTH < NK else []
        mi = 0
        for grp in range(4):
            for i in range(2):
                d = acc(grp, i)
                e(f"v_mfma_f32_32x32x16_bf16 {v(d,16)}, {a(24*slot+8+4*grp,4)}, {a(24*slot+4*i,4)}, {'0' if ks==0 else v(d,16)}")
                mi += 1
        for l in nxt: e(l)
    A.stamp()
    e("v_and_b32 v3, 31, v1")
    e("v_lshrrev_b32 v4, 5, v1")
    e(f"v_mul_u32_u24 v5, {RED_STRIDE}, v3")
    e("v_lshl_add_u32 v5, v4, 4, v5")
    e(f"s_mul_i32 s3, s24, {RED_W}")
    e("v_add_u32 v5, s3, v5")
    A.nop(12)
    for grp in range(4):
        for i in range(2):
            for g in range(4):
                e(f"ds_write_b128 v5, {v(acc(grp,i)+4*g,4)} offset:{i*32*RED_STRIDE + grp*128 + g*32}")
    e(f"v_mul_u32_u24 v6, {RED_STRIDE}, v1")
    e("s_lshl_b32 s3, s24, 7")
    e("v_add_u32 v6, s3, v6")
    e(f"v_add_u32 v7, {2*RED_W}, v6")
    A.wait(lgkm=0)
    e("s_barrier")
    for w in range(4):
        for q in range(8):
            ad = 6 if w < 2 else 7
            e(f"ds_read_b128 {v(32+32*w+4*q,4)}, v{ad} offset:{(w&1)*RED_W + 16*q}")
    A.wait(lgkm=0)
    for w in range(1, 4):
        for p in range(16):
            e(f"v_pk_add_f32 {v(32+2*p,2)}, {v(32+2*p,2)}, {v(32+32*w+2*p,2)}")
    A.stamp()
    for p in range(16):
        e(f"v_cvt_pk_bf16_f32 v8, v{32+2*p}, v{33+2*p}")
        e(f"v_lshlrev_b32 v{32+2*p}, 16, v8")
        e(f"v_and_b32 v{33+2*p}, 0xffff0000, v8")
    e("s_mov_b32 s56, 0xbfb8aa3b")
    for r in range(32):
        e(f"v_mul_f32 v{64+r}, s56, v{32+r}")
    for r in range(32):
        e(f"v_exp_f32 v{64+r}, v{64+r}")
    for r in range(32):
        e(f"v_add_f32 v{64+r}, 1.0, v{64+r}")
    for r in range(32):
        e(f"v_rcp_f32 v{64+r}, v{64+r}")
    e("s_nop 0")
    for p in range(16):
        e(f"v_pk_mul_f32 {v(32+2*p,2)}, {v(32+2*p,2)}, {v(64+2*p,2)}")
    for p in range(16):
        e(f"v_cvt_pk_bf16_f32 v{96+p}, v{32+2*p}, v{33+2*p}")
    A.srd_off(16, P_WS, G_OFF, X_BYTES)
    e("s_lshl_b32 s3, s30, 6")
    e("v_add_u32 v8, s3, v1")
    e("s_mov_b32 s3, 1280")
    e("v_mul_lo_u32 v8, v8, s3")
    e("s_sub_u32 s56, 9, s31")
    e("s_and_b32 s3, s24, 1")
    e("s_cmp_eq_u32 s3, 1")
    e("s_cselect_b32 s56, s56, s31")
    e("s_lshr_b32 s3, s24, 1")
    e("s_mul_i32 s3, s3, 10")
    e("s_add_u32 s56, s56, s3")
    e("s_lshl_b32 s56, s56, 6")
    for q in range(4):
        e(f"buffer_store_dwordx4 {v(96+4*q,4)}, v8, s[16:19], s56 offen offset:{16*q}")
    A.stamp()
    if A.stamp_on: A.wait(vm=0)
    A.stamp(); A.rstamp()
    A.stamp_flush(P_WS, 33 * MB)
    e("s_endpgm")

K3_YB = 20480
K3_RS = 144
K3_RED = 4 * K3_YB
K3_LDS = K3_RED + 4 * 64 * K3_RS

def emit_k3(A):
    e = A.e
    A.c("==== inverse d-dft + final ====")
    A.rstamp(); A.stamp()
    A.srd_off(8, P_WS, Y2_OFF, Y2_BYTES)
    A.srd_table(12, "tab_it", DT_BYTES)
    A.srd_off(16, P_WS, G_OFF, X_BYTES)
    A.srd(20, P_X, X_BYTES)
    A.srd_off(4, P_WS, WMAX_OFF, WMAX_BYTES)
    wave_id(A)
    e("v_lshrrev_b32 v2, 3, v1")
    e("v_and_b32 v3, 7, v1")
    e("v_and_b32 v4, 2, v2")
    e("v_lshlrev_b32 v4, 1, v4")
    e("v_xor_b32 v3, v3, v4")
    e("v_lshlrev_b32 v2, 12, v2")
    e("v_lshl_add_u32 v2, v3, 4, v2")
    e("s_mul_i32 s25, s24, 655360")
    e("s_lshl_b32 s3, s30, 7")
    e("s_add_u32 s25, s25, s3")
    e(f"s_mul_i32 s26, s24, {K3_YB}")
    for n in range(20):
        e(f"s_add_u32 m0, s26, {n*1024}")
        e("s_nop 0")
        e("buffer_load_dwordx4 v2, s[8:11], s25 offen lds")
        e("s_add_u32 s25, s25, 32768")
    e("v_lshlrev_b32 v5, 4, v1")
    e("s_mul_i32 s3, s24, 5")
    e("s_add_u32 s3, s3, s31")
    e("s_mul_i32 s27, s3, 10240")
    for t in range(10):
        if t % 4 == 0 and t:
            e("s_add_u32 s27, s27, 4096")
        e(f"buffer_load_dwordx4 {v(32+4*t,4)}, v5, s[12:15], s27 offen offset:{(t%4)*1024}")
    e("v_lshlrev_b32 v6, 2, v1")
    e("buffer_load_dword v7, v6, s[4:7], 0 offen")
    e("v_lshrrev_b32 v8, 2, v1")
    e("v_and_b32 v8, 3, v8")
    e("v_lshlrev_b32 v8, 3, v8")
    e("v_lshrrev_b32 v9, 4, v1")
    e("v_and_b32 v9, 1, v9")
    e("v_lshl_add_u32 v8, v9, 2, v8")
    e("v_and_b32 v9, 3, v1")
    e("v_add_u32 v8, v8, v9")
    e("v_and_b32 v9, 32, v1")
    e("v_add_u32 v8, v8, v9")
    e("s_lshl_b32 s3, s30, 6")
    e("v_add_u32 v8, s3, v8")
    e("s_mov_b32 s3, 1280")
    e("v_mul_lo_u32 v8, v8, s3")
    e("s_sub_u32 s56, 9, s31")
    e("s_and_b32 s3, s24, 1")
    e("s_cmp_eq_u32 s3, 1")
    e("s_cselect_b32 s56, s56, s31")
    e("s_lshr_b32 s3, s24, 1")
    e("s_mul_i32 s3, s3, 10")
    e("s_add_u32 s56, s56, s3")
    e("s_lshl_b32 s56, s56, 6")
    for q in range(4):
        e(f"buffer_load_dwordx4 {v(80+4*q,4)}, v8, s[16:19], s56 offen offset:{16*q}")
    for q in range(4):
        e(f"buffer_load_dwordx4 {v(96+4*q,4)}, v8, s[20:23], s56 offen offset:{16*q}")
    e("v_lshrrev_b32 v10, 5, v1")
    e("v_lshrrev_b32 v11, 2, v1")
    e("v_and_b32 v11, 3, v11")
    e("v_lshl_add_u32 v12, v10, 3, v11")
    e("v_lshlrev_b32 v12, 7, v12")
    e("v_lshrrev_b32 v13, 4, v1")
    e("v_and_b32 v13, 1, v13")
    e("v_lshl_add_u32 v12, v13, 5, v12")
    e("v_and_b32 v13, 3, v1")
    e("v_lshl_add_u32 v12, v13, 3, v12")
    e("v_lshrrev_b32 v13, 1, v11")
    e("v_lshl_add_u32 v12, v13, 6, v12")
    e("v_add_u32 v12, s26, v12")
    e("v_xor_b32 v13, 64, v12")
    A.stamp()
    A.wait(vm=9)
    A.stamp()
    for t in range(10):
        for i in range(2):
            D = 128 + 8 * t + 4 * i
            e(f"ds_read_b64_tr_b16 {v(D,2)}, v{12+i} offset:{t*2048}")
            e(f"ds_read_b64_tr_b16 {v(D+2,2)}, v{12+i} offset:{t*2048+512}")
    for t in range(10):
        A.wait(lgkm=min(15, 4 * (9 - t)))
        for i in range(2):
            d = 208 + 16 * i
            e(f"v_mfma_f32_32x32x16_f16 {v(d,16)}, {v(32+4*t,4)}, {v(128+8*t+4*i,4)}, {'0' if t==0 else v(d,16)}")
    A.wait(vm=8)
    wmax_scale(A, 7, 59)
    e("s_sub_u32 s59, 254, s59")
    e("s_lshl_b32 s59, s59, 23")
    e("v_mov_b32 v6, s59")
    e("v_mul_f32 v6, 0x3b4ccccd, v6")
    e("v_and_b32 v3, 31, v1")
    e(f"v_mul_u32_u24 v5, {K3_RS}, v3")
    e("v_lshl_add_u32 v5, v10, 4, v5")
    e(f"s_mul_i32 s3, s24, {64*K3_RS}")
    e(f"s_add_u32 s3, s3, {K3_RED}")
    e("v_add_u32 v5, s3, v5")
    A.nop(4)
    for i in range(2):
        for g in range(4):
            e(f"ds_write_b128 v5, {v(208+16*i+4*g,4)} offset:{i*32*K3_RS + g*32}")
    e(f"v_mul_u32_u24 v5, {K3_RS}, v1")
    e(f"v_add_u32 v5, {K3_RED}, v5")
    A.wait(lgkm=0)
    e("s_barrier")
    for z in range(4):
        for q in range(8):
            e(f"ds_read_b128 {v(128+32*z+4*q,4)}, v5 offset:{z*64*K3_RS + 16*q}")
    e("s_and_b32 s3, s24, 1")
    e("s_cmp_eq_u32 s3, 1")
    e("s_cselect_b32 s60, 1.0, -1.0") if False else None
    e("s_cselect_b32 s28, 1.0, -1.0")
    e("s_xor_b32 s3, s24, 1")
    e("s_lshr_b32 s29, s24, 1")
    e("s_xor_b32 s3, s3, s29")
    e("s_and_b32 s3, s3, 1")
    e("s_cmp_eq_u32 s3, 1")
    e("s_cselect_b32 s29, 1.0, -1.0")
    e("s_cmp_ge_u32 s24, 2")
    e("s_cselect_b32 s32, 1.0, -1.0")
    A.wait(lgkm=0)
    for r in range(32):
        e(f"v_fma_f32 v{128+r}, v{160+r}, s28, v{128+r}")
        e(f"v_fma_f32 v{128+r}, v{192+r}, s29, v{128+r}")
        e(f"v_fma_f32 v{128+r}, v{224+r}, s32, v{128+r}")
        e(f"v_mul_f32 v{128+r}, v6, v{128+r}")
    A.wait(vm=0)
    A.srd(16, P_OUT, X_BYTES)
    def fin(rev):
        for p in range(16):
            d0, d1 = (2 * p, 2 * p + 1) if not rev else (31 - 2 * p, 30 - 2 * p)
            e(f"v_cvt_pk_bf16_f32 v10, v{128+d0}, v{128+d1}")
            e("v_lshlrev_b32 v12, 16, v10")
            e("v_and_b32 v13, 0xffff0000, v10")
            e(f"v_lshlrev_b32 v14, 16, v{80+p}")
            e(f"v_and_b32 v15, 0xffff0000, v{80+p}")
            e("v_pk_mul_f32 v[12:13], v[12:13], v[14:15]")
            e("v_cvt_pk_bf16_f32 v10, v12, v13")
            e("v_lshlrev_b32 v12, 16, v10")
            e("v_and_b32 v13, 0xffff0000, v10")
            e(f"v_lshlrev_b32 v14, 16, v{96+p}")
            e(f"v_and_b32 v15, 0xffff0000, v{96+p}")
            e("v_pk_add_f32 v[12:13], v[12:13], v[14:15]")
            e(f"v_cvt_pk_bf16_f32 v{112+p}, v12, v13")
    e("s_and_b32 s3, s24, 1")
    e("s_cmp_eq_u32 s3, 1")
    e("s_cbranch_scc1 k3_rev")
    fin(False)
    e("s_branch k3_store")
    A.label("k3_rev")
    fin(True)
    A.label("k3_store")
    for q in range(4):
        e(f"buffer_store_dwordx4 {v(112+4*q,4)}, v8, s[16:19], s56 offen offset:{16*q}")
    A.stamp()
    if A.stamp_on: A.wait(vm=0)
    A.stamp(); A.rstamp()
    A.stamp_flush(P_WS, 34 * MB)
    e("s_endpgm")
```

```python
MB = 1 << 20
H_OFF = 0
H_BYTES = 2048 * 1536 * 2
Y1_OFF = 8 * MB
Y1_BYTES = 640 * 4096
WP_OFF = 12 * MB
WP_BYTES = 321 * 8192
W2F_OFF = 16 * MB
W2F_BYTES = 1536 * 640 * 2
Y2_OFF = 20 * MB
Y2_BYTES = 640 * 4096
G_OFF = 24 * MB
G_BYTES = 2048 * 640 * 4
WMAX_OFF = 31 * MB
WMAX_BYTES = 256
X_BYTES = 2048 * 640 * 2
W13_BYTES = 640 * 1536 * 2
W2_BYTES = 1536 * 640 * 2
WRI_BYTES = 2048 * 321 * 2
P_X, P_WR, P_WI, P_BX, P_W1, P_W3, P_W2, P_OUT, P_DBG, P_WS = 36, 38, 40, 42, 44, 46, 48, 50, 52, 54
STP_OFF = 29 * MB
RS_BYTES = 16 * 10 * 1024
CSP_BYTES = 12 * 10 * 1024
```

```python
import numpy as np
def f16bits(x):
    return int(np.float16(x).view(np.uint16))

def emit_cos_syms(out, prefix, scale):
    for j in range(1280):
        out.append(f".set {prefix}{j}, {f16bits(np.cos(2*np.pi*j/1280)*scale)}")

def emit_dtables(out):
    emit_cos_syms(out, "qa", 1.0 / 16)
    emit_cos_syms(out, "qb", 1.0)
    out.append(".altmacro")
    out.append(".macro EA i\n.short qa\\i\n.endm")
    out.append(".macro EB i\n.short qb\\i\n.endm")
    kmul = [(2, 0), (2, 2), (2, 1), (2, 1)]
    for (name, mac, fwd) in (("tab_ft", "EA", True), ("tab_it", "EB", False)):
        out.append(".p2align 8")
        out.append(f"{name}:")
        for z in range(4):
            a_, b_ = kmul[z]
            if z in (0, 2): ph = 0
            else: ph = 320 if fwd else 960
            out.append(".set tn, 0\n.rept 5\n.set tt, 0\n.rept 10\n.set tl, 0\n.rept 64\n.set tj, 0\n.rept 8")
            if fwd:
                out.append(f"{mac} %(((2*(16*tt+8*(tl>>5)+tj)+1)*({a_}*(32*tn+(tl&31))+{b_})+{ph}) % 1280)")
            else:
                out.append(f"{mac} %(((2*(32*tn+(tl&31))+1)*({a_}*(16*tt+8*(tl>>5)+tj)+{b_})+{ph}) % 1280)")
            out.append(".set tj, tj+1\n.endr\n.set tl, tl+1\n.endr\n.set tt, tt+1\n.endr\n.set tn, tn+1\n.endr")
    out.append(".noaltmacro")

DT_BYTES = 4 * 5 * 10 * 1024

def words(out, arr):
    a = np.ascontiguousarray(arr).view(np.uint32).ravel()
    for i in range(0, len(a), 8):
        out.append(".long " + ",".join(f"0x{x:x}" for x in a[i:i+8]))

def kappa(t, h, j):
    return 16 * t + 8 * (j >> 2) + 4 * h + (j & 3)

def fft_tables():
    lane = np.arange(64); l5 = lane & 31; h = lane >> 5
    j = np.arange(8)
    fr = []
    def mk(N, t, T, fn, sg):
        kap = kappa(t, h[:, None], j[None, :])
        nu = (32 * T + l5)[:, None]
        return (sg * fn(2 * np.pi * ((kap * nu) % N) / N)).astype(np.float16)
    for fn, sg in ((np.cos, 1), (np.sin, 1), (np.sin, -1)):
        for t in range(4):
            for T in range(2):
                fr.append(mk(64, t, T, fn, sg).view(np.uint32))
    for fn, sg in ((np.cos, 1), (np.sin, 1), (np.sin, -1)):
        for t in range(2):
            fr.append(mk(32, t, 0, fn, sg).view(np.uint32))
    i = np.arange(4)
    for fn, sg in ((np.cos, 1), (np.sin, -1)):
        for T in range(2):
            for g in range(4):
                n2 = 8 * g + 4 * h[:, None] + i[None, :]
                k1 = (32 * T + l5)[:, None]
                fr.append((sg * fn(2 * np.pi * (n2 * k1) / 2048) / 8).astype(np.float32).view(np.uint32))
    for fn, sg in ((np.cos, 1), (np.sin, 1)):
        for T in range(2):
            for g in range(4):
                k1 = 32 * T + 8 * g + 4 * h[:, None] + i[None, :]
                n2 = l5[:, None]
                fr.append((sg * fn(2 * np.pi * (n2 * k1) / 2048) / 32).astype(np.float32).view(np.uint32))
    return np.stack(fr)

def emit_fft_tables(out):
    t = fft_tables()
    out.append(".p2align 8")
    out.append("tab_fft:")
    words(out, t)
    return t.size * 4
FFT_TAB_BYTES = 62 * 1024
```

```python
import sys
from dsl import *
from layout import *
import k1_glu, k1_aux, tables, k2

NAME = "recurrent_scan__spectral_gfnet__glu_gated_swiglu__prompt"
HEADER = open("cdna_kernels/" + NAME + ".s.ref").read().split("; Override launch geometry")[0]

def common_prologue(A):
    A.e("s_load_dwordx16 s[36:51], s[0:1], 0")
    A.e("s_load_dwordx4 s[52:55], s[0:1], 64")

def gen_k1(A, opts):
    A.raw(".globl k1_kernel")
    A.raw(".p2align 8")
    A.raw(".type k1_kernel,@function")
    A.label("k1_kernel")
    A.e("s_cmp_ge_u32 s2, 256")
    A.e("s_cbranch_scc1 k1_done")
    common_prologue(A)
    A.e("s_and_b32 s4, s2, 7")
    A.e("s_lshr_b32 s5, s2, 3")
    A.e("s_cmp_ge_u32 s5, 24")
    A.e("s_cbranch_scc1 k1_aux")
    A.e("s_and_b32 s30, s4, 1")
    A.e("s_lshl_b32 s30, s30, 3")
    A.e("s_and_b32 s6, s5, 7")
    A.e("s_add_u32 s30, s30, s6")
    A.e("s_lshr_b32 s31, s4, 1")
    A.e("s_mul_i32 s31, s31, 3")
    A.e("s_lshr_b32 s6, s5, 3")
    A.e("s_add_u32 s31, s31, s6")
    A.wait(lgkm=0)
    k1_glu.emit_glu(A)
    A.label("k1_aux")
    A.wait(lgkm=0)
    k1_aux.emit_aux(A)
    A.label("k1_done")
    A.e("s_endpgm")

def gen_k2(A, opts):
    A.raw(".globl k2_kernel")
    A.raw(".p2align 8")
    A.raw(".type k2_kernel,@function")
    A.label("k2_kernel")
    A.e("s_cmp_ge_u32 s2, 241")
    A.e("s_cbranch_scc1 k2_done")
    common_prologue(A)
    A.e("s_cmp_ge_u32 s2, 81")
    A.e("s_cbranch_scc1 k2_gemm")
    A.e("s_mov_b32 s30, s2")
    A.wait(lgkm=0)
    k2.emit_fft(A)
    A.label("k2_gemm")
    A.e("s_sub_u32 s3, s2, 81")
    A.e("s_and_b32 s30, s3, 7")
    A.e("s_lshl_b32 s30, s30, 2")
    A.e("s_lshr_b32 s4, s3, 3")
    A.e("s_and_b32 s4, s4, 3")
    A.e("s_add_u32 s30, s30, s4")
    A.e("s_lshr_b32 s31, s3, 5")
    A.wait(lgkm=0)
    k2.emit_gemm2(A)
    A.label("k2_done")
    A.e("s_endpgm")

def gen_k3(A, opts):
    A.raw(".globl k3_kernel")
    A.raw(".p2align 8")
    A.raw(".type k3_kernel,@function")
    A.label("k3_kernel")
    A.e("s_cmp_ge_u32 s2, 160")
    A.e("s_cbranch_scc1 k3_done")
    common_prologue(A)
    A.e("s_and_b32 s30, s2, 7")
    A.e("s_lshl_b32 s30, s30, 2")
    A.e("s_lshr_b32 s4, s2, 3")
    A.e("s_and_b32 s4, s4, 3")
    A.e("s_add_u32 s30, s30, s4")
    A.e("s_lshr_b32 s31, s2, 5")
    A.wait(lgkm=0)
    k2.emit_k3(A)
    A.label("k3_done")
    A.e("s_endpgm")

def build(opts):
    A = Asm()
    A.stamp_on = opts.get("stamp", False)
    launches = [("k1_kernel", 256, 256, k1_glu.GLU_LDS_BYTES), ("k2_kernel", 241, 256, k2.G2_LDS), ("k3_kernel", 160, 256, k2.K3_LDS)]
    out = HEADER
    for (k, g, b, l) in launches:
        out += f"; @launch kernel={k} grid=({g},1,1) block=({b},1,1) lds={l}\n"
    out += '.amdgcn_target "amdgcn-amd-amdhsa--gfx950"\n.text\n'
    gen_k1(A, opts)
    gen_k2(A, opts)
    gen_k3(A, opts)
    out += A.text()
    out += kernel_desc("k1_kernel", 512, 102, 256)
    out += kernel_desc("k2_kernel", 512, 102, 256)
    out += kernel_desc("k3_kernel", 256, 102, 256)
    tl = ['.section .rodata,"a"']
    tables.emit_dtables(tl)
    tables.emit_fft_tables(tl)
    out += "\n".join(tl) + "\n"
    return out

if __name__ == "__main__":
    opts = {}
    for a_ in sys.argv[2:]:
        k, _, val = a_.partition("=")
        opts[k] = eval(val)
    open(sys.argv[1], "w").write(build(opts))
```
